```python
import torch

def _softmax(x, axis=-1):
    return torch.softmax(x, dim=axis)
def _gelu(x):
    return torch.nn.functional.gelu(x, approximate="tanh")
def _silu(x):
    return torch.nn.functional.silu(x)
def _sigmoid(x):
    return torch.sigmoid(x)
def _layernorm(x, axis=-1, eps=1e-5):
    m = x.mean(dim=axis, keepdim=True)
    v = x.var(dim=axis, keepdim=True, unbiased=False)
    return (x - m) / torch.sqrt(v + eps)
def _scatter_add(tgt, idx, src, axis=0):
    return tgt.clone().index_add_(axis, idx, src)
def _segment_sum(src, seg, n):
    out = torch.zeros((n,) + src.shape[1:], dtype=src.dtype)
    return out.index_add_(0, seg, src)
def _pad(x, pw):
    flat = tuple(v for pair in reversed(pw) for v in pair)
    return torch.nn.functional.pad(x, flat)

kernel_name = 'parallel_sum__spectral_fnet__dense_activation_squared_relu__prompt'

def setup_inputs():

    _w = (lambda a: (lambda t: t.to(torch.bfloat16) if t.is_floating_point() else t)(torch.as_tensor(a)))
    def _A_setup():
        B, S, D = 1, 2048, 512
        ns = torch.arange(S)[:, None] * torch.arange(S)[None, :]
        nd = torch.arange(D)[:, None] * torch.arange(D)[None, :]
        Ws_re = torch.cos(-2.0 * torch.pi * ns / S).to(float)
        Ws_im = torch.sin(-2.0 * torch.pi * ns / S).to(float)
        Wd_re = torch.cos(-2.0 * torch.pi * nd / D).to(float)
        Wd_im = torch.sin(-2.0 * torch.pi * nd / D).to(float)
        return {
            "x": _w((lambda *s: torch.randn(*s, dtype=torch.bfloat16) * 0.05)(B, S, D)),
            "dft_seq_re": _w(Ws_re),
            "dft_seq_im": _w(Ws_im),
            "dft_hid_re": _w(Wd_re),
            "dft_hid_im": _w(Wd_im),
        }
    _A_in = _A_setup()

    def _B_setup():
        B, S, D, F = 1, 2048, 512, 1792
        return {
            "x": _w((lambda *s: torch.randn(*s, dtype=torch.bfloat16) * 0.05)(B, S, D)),
            "w1": _w((lambda *s: torch.randn(*s, dtype=torch.bfloat16) * 0.2)(D, F)),
            "b1": _w((lambda *s: torch.randn(*s, dtype=torch.bfloat16) * 0.2)(F)),
            "w2": _w((lambda *s: torch.randn(*s, dtype=torch.bfloat16) * 0.2)(F, D)),
            "b2": _w((lambda *s: torch.randn(*s, dtype=torch.bfloat16) * 0.2)(D)),
        }
    _B_in = _B_setup()

    return {
        "A_x": _A_in["x"],
        "A_dft_seq_re": _A_in["dft_seq_re"],
        "A_dft_seq_im": _A_in["dft_seq_im"],
        "A_dft_hid_re": _A_in["dft_hid_re"],
        "A_dft_hid_im": _A_in["dft_hid_im"],
        "B_x": _B_in["x"],
        "B_w1": _B_in["w1"],
        "B_b1": _B_in["b1"],
        "B_w2": _B_in["w2"],
        "B_b2": _B_in["b2"],
    }

def reference(A_x, A_dft_seq_re, A_dft_seq_im, A_dft_hid_re, A_dft_hid_im, B_x, B_w1, B_b1, B_w2, B_b2):
    def _A_ref(x, dft_seq_re, dft_seq_im, dft_hid_re, dft_hid_im):
        a = torch.einsum("bsd,ed->bse", x, dft_hid_re)
        b = torch.einsum("bsd,ed->bse", x, dft_hid_im)
        y = torch.einsum("ts,bse->bte", dft_seq_re, a) - torch.einsum("ts,bse->bte", dft_seq_im, b)
        return y

    def _B_ref(x, w1, b1, w2, b2):
        h = torch.einsum("bsd,df->bsf", x, w1) + b1
        zero = torch.zeros_like(h)
        r = torch.where(h > zero, h, zero)
        h = r * r
        out = torch.einsum("bsf,fd->bsd", h, w2) + b2
        return out

    x = A_x
    xn = _layernorm(x, axis=-1)
    return x + _A_ref(xn, A_dft_seq_re, A_dft_seq_im, A_dft_hid_re, A_dft_hid_im) + _B_ref(xn, B_w1, B_b1, B_w2, B_b2)
```

```python
import sys

NAME = "parallel_sum__spectral_fnet__dense_activation_squared_relu__prompt"
OUT = "cdna_kernels/%s.s" % NAME

XN_OFF = 0x0
BCAT_OFF = 0x200000
W2T_OFF = 0x500000
AT_OFF = 0x700000
H_OFF = 0xB00000
PART_OFF = 0x2000000

L = []
def e(s=""):
    L.append(s)

def srd(d, b, off, nbytes):
    if off:
        e(f"    s_add_u32 s{d}, s{b}, {off:#x}")
        e(f"    s_addc_u32 s{d+1}, s{b+1}, 0")
    else:
        e(f"    s_mov_b32 s{d}, s{b}")
        e(f"    s_mov_b32 s{d+1}, s{b+1}")
    e(f"    s_and_b32 s{d+1}, s{d+1}, 0xffff")
    e(f"    s_mov_b32 s{d+2}, {nbytes:#x}")
    e(f"    s_mov_b32 s{d+3}, 0x20000")

def kernel_begin(name):
    e(f".globl {name}")
    e(".p2align 8")
    e(f".type {name},@function")
    e(f"{name}:")

def kd(name, vgpr, sgpr=102):
    acc = (vgpr + 3) // 4 * 4
    e('.section .rodata,"a"')
    e(".p2align 6")
    e(f".amdhsa_kernel {name}")
    e(f"  .amdhsa_next_free_vgpr {vgpr}")
    e(f"  .amdhsa_next_free_sgpr {sgpr}")
    e(f"  .amdhsa_accum_offset {acc}")
    e("  .amdhsa_group_segment_fixed_size 0")
    e("  .amdhsa_kernarg_size 104")
    e("  .amdhsa_user_sgpr_count 2")
    e("  .amdhsa_user_sgpr_kernarg_segment_ptr 1")
    e("  .amdhsa_system_sgpr_workgroup_id_x 1")
    e(".end_amdhsa_kernel")
    e(".text")

def gen_prep():
    kernel_begin("prep_kernel")
    e("    s_cmp_ge_u32 s2, 1024")
    e("    s_cbranch_scc1 prep_done")
    e("    s_load_dwordx2 s[4:5], s[0:1], 0")
    e("    s_load_dwordx2 s[6:7], s[0:1], 96")
    e("    s_cmp_ge_u32 s2, 512")
    e("    s_cbranch_scc1 prep_not_ln")
    e("    s_waitcnt lgkmcnt(0)")
    srd(8, 4, 0, 2048 * 512 * 2)
    srd(12, 6, XN_OFF, 2048 * 512 * 2)
    e("    v_lshrrev_b32 v1, 6, v0")
    e("    v_and_b32 v2, 63, v0")
    e("    s_lshl_b32 s3, s2, 2")
    e("    v_add_u32 v1, s3, v1")
    e("    v_lshlrev_b32 v1, 10, v1")
    e("    v_lshl_add_u32 v1, v2, 4, v1")
    e("    buffer_load_dwordx4 v[4:7], v1, s[8:11], 0 offen")
    e("    s_waitcnt vmcnt(0)")
    for i in range(4):
        e(f"    v_lshlrev_b32 v{8+2*i}, 16, v{4+i}")
        e(f"    v_and_b32 v{9+2*i}, 0xffff0000, v{4+i}")
    e("    v_add_f32 v16, v8, v9")
    for i in range(2, 8):
        e(f"    v_add_f32 v16, v16, v{8+i}")
    def wave_reduce(v):
        for off in (0x041F, 0x081F, 0x101F, 0x201F, 0x401F):
            e(f"    ds_swizzle_b32 v17, v{v} offset:{off:#x}")
            e("    s_waitcnt lgkmcnt(0)")
            e(f"    v_add_f32 v{v}, v{v}, v17")
        e("    s_nop 1")
        e(f"    v_readlane_b32 s20, v{v}, 0")
        e(f"    v_readlane_b32 s21, v{v}, 32")
        e("    s_nop 3")
        e(f"    v_mov_b32 v{v}, s20")
        e(f"    v_add_f32 v{v}, s21, v{v}")
    wave_reduce(16)
    e("    v_mul_f32 v16, 0x3b000000, v16")
    e("    v_sub_f32 v18, v8, v16")
    e("    v_mul_f32 v19, v18, v18")
    for i in range(1, 8):
        e(f"    v_sub_f32 v18, v{8+i}, v16")
        e(f"    v_fmac_f32 v19, v18, v18")
    wave_reduce(19)
    e("    v_mul_f32 v19, 0x3b000000, v19")
    e("    v_cvt_pk_bf16_f32 v20, v16, v19")
    e("    v_lshlrev_b32 v16, 16, v20")
    e("    v_and_b32 v19, 0xffff0000, v20")
    e("    v_add_f32 v19, 0x3727c5ac, v19")
    e("    v_cvt_pk_bf16_f32 v20, v19, v19")
    e("    v_lshlrev_b32 v19, 16, v20")
    e("    v_sqrt_f32 v19, v19")
    e("    s_nop 1")
    e("    v_cvt_pk_bf16_f32 v20, v19, v19")
    e("    v_lshlrev_b32 v19, 16, v20")
    e("    v_rcp_f32 v21, v19")
    e("    s_nop 1")
    for i in range(4):
        a, b = 8 + 2 * i, 9 + 2 * i
        e(f"    v_sub_f32 v{a}, v{a}, v16")
        e(f"    v_sub_f32 v{b}, v{b}, v16")
        e(f"    v_cvt_pk_bf16_f32 v20, v{a}, v{b}")
        e(f"    v_lshlrev_b32 v{a}, 16, v20")
        e(f"    v_and_b32 v{b}, 0xffff0000, v20")
        e(f"    v_mul_f32 v22, v{a}, v21")
        e(f"    v_fma_f32 v23, -v22, v19, v{a}")
        e(f"    v_fma_f32 v{a}, v23, v21, v22")
        e(f"    v_mul_f32 v22, v{b}, v21")
        e(f"    v_fma_f32 v23, -v22, v19, v{b}")
        e(f"    v_fma_f32 v{b}, v23, v21, v22")
        e(f"    v_cvt_pk_bf16_f32 v{4+i}, v{a}, v{b}")
    e("    buffer_store_dwordx4 v[4:7], v1, s[12:15], 0 offen")
    e("    s_endpgm")
    e("prep_not_ln:")
    e("    s_waitcnt lgkmcnt(0)")
    e("    s_cmp_ge_u32 s2, 960")
    e("    s_cbranch_scc1 prep_copy")
    e("    s_cmp_ge_u32 s2, 736")
    e("    s_cbranch_scc1 prep_w2")
    e("    s_load_dwordx2 s[4:5], s[0:1], 48")
    e("    s_sub_u32 s3, s2, 512")
    e("    s_waitcnt lgkmcnt(0)")
    srd(8, 4, 0, 512 * 1792 * 2)
    srd(12, 6, BCAT_OFF + 1024 * 1024, 1792 * 1024)
    e("    s_and_b32 s16, s3, 7")
    e("    s_lshr_b32 s17, s3, 3")
    e("    s_mov_b32 s18, 3584")
    e("    s_mov_b32 s19, 1024")
    e("    s_branch prep_tr")
    e("prep_w2:")
    e("    s_load_dwordx2 s[4:5], s[0:1], 64")
    e("    s_sub_u32 s3, s2, 736")
    e("    s_waitcnt lgkmcnt(0)")
    srd(8, 4, 0, 512 * 1792 * 2)
    srd(12, 6, W2T_OFF, 512 * 4096)
    e("    s_lshr_b32 s16, s3, 3")
    e("    s_and_b32 s17, s3, 7")
    e("    s_mov_b32 s18, 1024")
    e("    s_mov_b32 s19, 4096")
    e("prep_tr:")
    e("    v_lshrrev_b32 v1, 3, v0")
    e("    v_and_b32 v2, 7, v0")
    e("    s_lshl_b32 s20, s16, 6")
    e("    s_lshl_b32 s21, s17, 7")
    e("    v_add_u32 v3, s20, v1")
    e("    v_mul_lo_u32 v3, v3, s18")
    e("    v_lshl_add_u32 v3, v2, 4, v3")
    e("    v_add_u32 v3, s21, v3")
    e("    s_lshl_b32 s22, s18, 5")
    e("    buffer_load_dwordx4 v[4:7], v3, s[8:11], 0 offen")
    e("    buffer_load_dwordx4 v[8:11], v3, s[8:11], s22 offen")
    e("    v_mul_u32_u24 v12, 8*144, v2")
    e("    v_lshl_add_u32 v12, v1, 1, v12")
    e("    s_waitcnt vmcnt(0)")
    for i in range(2):
        for j in range(4):
            r = 4 + 4 * i + j
            e(f"    ds_write_b16 v12, v{r} offset:{(2*j)*144 + i*64}")
            e(f"    ds_write_b16_d16_hi v12, v{r} offset:{(2*j+1)*144 + i*64}")
    e("    s_waitcnt lgkmcnt(0)")
    e("    s_barrier")
    e("    v_mul_u32_u24 v12, 144, v1")
    e("    v_lshl_add_u32 v12, v2, 4, v12")
    e("    ds_read_b128 v[4:7], v12")
    e(f"    ds_read_b128 v[8:11], v12 offset:{32*144}")
    e("    s_lshl_b32 s20, s17, 6")
    e("    s_lshl_b32 s21, s16, 7")
    e("    v_add_u32 v3, s20, v1")
    e("    v_mul_lo_u32 v3, v3, s19")
    e("    v_lshl_add_u32 v3, v2, 4, v3")
    e("    v_add_u32 v3, s21, v3")
    e("    s_lshl_b32 s22, s19, 5")
    e("    s_waitcnt lgkmcnt(0)")
    e("    buffer_store_dwordx4 v[4:7], v3, s[12:15], 0 offen")
    e("    buffer_store_dwordx4 v[8:11], v3, s[12:15], s22 offen")
    e("    s_endpgm")
    e("prep_copy:")
    e("    s_sub_u32 s3, s2, 960")
    e("    s_load_dwordx2 s[4:5], s[0:1], 24")
    e("    s_load_dwordx2 s[24:25], s[0:1], 32")
    e("    s_waitcnt lgkmcnt(0)")
    e("    s_cmp_ge_u32 s3, 32")
    e("    s_cselect_b32 s4, s24, s4")
    e("    s_cselect_b32 s5, s25, s5")
    srd(8, 4, 0, 512 * 512 * 2)
    srd(12, 6, BCAT_OFF, 1024 * 1024)
    e("    s_and_b32 s16, s3, 31")
    e("    s_lshl_b32 s16, s16, 14")
    e("    s_lshl_b32 s17, s3, 14")
    e("    v_lshlrev_b32 v1, 4, v0")
    for i in range(4):
        e(f"    buffer_load_dwordx4 v[{4+4*i}:{7+4*i}], v1, s[8:11], s16 offen offset:0")
        e(f"    s_add_u32 s16, s16, 4096")
    e("    s_waitcnt vmcnt(0)")
    for i in range(4):
        e(f"    buffer_store_dwordx4 v[{4+4*i}:{7+4*i}], v1, s[12:15], s17 offen offset:0")
        e(f"    s_add_u32 s17, s17, 4096")
    e("prep_done:")
    e("    s_endpgm")
    kd("prep_kernel", 32)

G1_STAGE = (128 + 176) * 128
G1_NS = 4
def gen_gemm1():
    kernel_begin("gemm1_kernel")
    e("    s_cmp_ge_u32 s2, 256")
    e("    s_cbranch_scc1 g1_done")
    e("    s_load_dwordx2 s[6:7], s[0:1], 96")
    e("    s_load_dwordx2 s[4:5], s[0:1], 56")
    e("    s_and_b32 s16, s2, 15")
    e("    s_lshr_b32 s17, s2, 4")
    e("    v_lshrrev_b32 v1, 6, v0")
    e("    v_and_b32 v2, 63, v0")
    e("    s_nop 0")
    e("    v_readfirstlane_b32 s18, v1")
    e("    s_waitcnt lgkmcnt(0)")
    srd(8, 6, XN_OFF, 2048 * 1024)
    srd(12, 6, BCAT_OFF, 2816 * 1024)
    e("    v_lshrrev_b32 v3, 3, v2")
    e("    v_and_b32 v4, 7, v2")
    e("    v_lshrrev_b32 v5, 4, v2")
    e("    s_and_b32 s19, s18, 1")
    e("    s_lshl_b32 s19, s19, 2")
    e("    v_add_u32 v5, s19, v5")
    e("    v_xor_b32 v4, v4, v5")
    e("    v_lshlrev_b32 v4, 4, v4")
    e("    v_lshl_add_u32 v3, v3, 10, v4")
    e("    s_lshl_b32 s20, s16, 7")
    e("    s_lshl_b32 s21, s18, 3")
    e("    s_add_u32 s20, s20, s21")
    e("    s_lshl_b32 s20, s20, 10")
    e("    v_add_u32 v10, s20, v3")
    for i in range(1, 4):
        e(f"    v_add_u32 v{10+i}, {32*1024*i:#x}, v10")
    e("    s_mul_i32 s20, s17, 176")
    e("    s_add_u32 s20, s20, s21")
    e("    s_lshl_b32 s20, s20, 10")
    e("    v_add_u32 v14, s20, v3")
    for i in range(1, 5):
        e(f"    v_add_u32 v{14+i}, {32*1024*i:#x}, v14")
    e("    s_cmp_lt_u32 s18, 2")
    e("    s_cselect_b32 s22, 20, 16")
    e("    s_lshl_b32 s23, s22, 13")
    e("    v_add_u32 v19, s23, v14")
    e("    s_lshl_b32 s22, s22, 10")
    e("    s_lshl_b32 s24, s18, 10")
    e("    v_and_b32 v5, 15, v2")
    e("    v_lshrrev_b32 v6, 4, v2")
    e("    v_lshrrev_b32 v7, 1, v5")
    e("    v_and_b32 v7, 7, v7")
    e("    v_xor_b32 v6, v6, v7")
    e("    v_lshlrev_b32 v6, 4, v6")
    e("    v_lshl_add_u32 v6, v5, 7, v6")
    e("    s_lshl_b32 s25, s18, 12")
    e("    v_add_u32 v20, s25, v6")
    e("    v_xor_b32 v21, 64, v20")
    e("    v_add_u32 v22, 0x4000, v6")
    e("    v_xor_b32 v23, 64, v22")
    ACC = 24
    FR = [112, 164]
    for r in range(88):
        e(f"    v_mov_b32 v{ACC+r}, 0")
    e("    s_mov_b32 s26, 0")
    e("    s_mov_b32 s27, 0")
    e("    s_mov_b32 s28, 0")

    def dma():
        e("    s_lshl_b32 s29, s26, 7")
        e("    s_cmp_ge_u32 s26, 8")
        e("    s_cselect_b32 s29, 0x80000000, s29")
        e("    s_add_u32 s30, s27, s24")
        for i in range(4):
            e(f"    s_add_u32 m0, s30, {4096*i}")
            e("    s_nop 0")
            e(f"    buffer_load_dwordx4 v{10+i}, s[8:11], s29 offen lds")
        for i in range(5):
            e(f"    s_add_u32 m0, s30, {16384 + 4096*i}")
            e("    s_nop 0")
            e(f"    buffer_load_dwordx4 v{14+i}, s[12:15], s29 offen lds")
        e("    s_add_u32 s31, s30, s22")
        e(f"    s_add_u32 m0, s31, 16384")
        e("    s_nop 0")
        e(f"    buffer_load_dwordx4 v19, s[12:15], s29 offen lds")
        e("    s_add_u32 s26, s26, 1")
        e(f"    s_add_u32 s27, s27, {G1_STAGE}")
        e(f"    s_cmp_ge_u32 s27, {G1_STAGE*G1_NS}")
        e("    s_cselect_b32 s27, 0, s27")

    def reads(buf, ks):
        f = FR[buf]
        va, vb = 20 + ks, 22 + ks
        e(f"    ds_read_b128 v[{f}:{f+3}], v{va}")
        e(f"    ds_read_b128 v[{f+4}:{f+7}], v{va} offset:2048")
        for cb in range(11):
            e(f"    ds_read_b128 v[{f+8+4*cb}:{f+11+4*cb}], v{vb} offset:{2048*cb}")

    def mfmas(buf, nab):
        f = FR[buf]
        for cb in range(11):
            for rb in range(2):
                a = f"v[{f+4*rb}:{f+4*rb+3}]"
                b = f"v[{f+8+4*cb}:{f+11+4*cb}]"
                d = ACC + (cb * 2 + rb) * 4
                if cb < nab:
                    e(f"    v_mfma_f32_16x16x32_bf16 v[{d}:{d+3}], {a}, {b}, v[{d}:{d+3}]")
                else:
                    e(f"    v_mfma_f32_16x16x32_bf16 v[{d}:{d+3}], {b}, {a}, v[{d}:{d+3}]")

    def adv_read():
        e(f"    s_add_u32 s28, s28, {G1_STAGE}")
        e(f"    s_cmp_ge_u32 s28, {G1_STAGE*G1_NS}")
        e(f"    s_cselect_b32 s33, {G1_STAGE*G1_NS}, 0")
        e(f"    s_cselect_b32 s28, 0, s28")
        e(f"    s_sub_u32 s33, {G1_STAGE}, s33")
        for v in range(20, 24):
            e(f"    v_add_u32 v{v}, s33, v{v}")

    for _ in range(G1_NS - 1):
        dma()
    e(f"    s_waitcnt vmcnt({10*(G1_NS-2)})")
    e("    s_barrier")
    reads(0, 0)
    e("    s_mov_b32 s32, 0")
    e("    s_cmp_lt_u32 s17, 5")
    e("    s_cbranch_scc1 g1_loop_11")
    e("    s_cmp_eq_u32 s17, 5")
    e("    s_cbranch_scc1 g1_loop_9")
    e("    s_branch g1_loop_0")
    for nab in (11, 9, 0):
        e(f"g1_loop_{nab}:")
        reads(1, 1)
        e("    s_waitcnt lgkmcnt(13)")
        mfmas(0, nab)
        e(f"    s_waitcnt vmcnt({10*(G1_NS-3)})")
        e("    s_barrier")
        dma()
        adv_read()
        reads(0, 0)
        e("    s_waitcnt lgkmcnt(13)")
        mfmas(1, nab)
        e("    s_add_u32 s32, s32, 1")
        e("    s_cmp_lt_u32 s32, 8")
        e(f"    s_cbranch_scc1 g1_loop_{nab}")
        e("    s_waitcnt lgkmcnt(0)")
        e("    s_nop 7")
        e("    s_nop 7")
        srd(8, 6, AT_OFF, 1024 * 4096)
        srd(12, 6, H_OFF, 2048 * 4096)
        srd(36, 4, 0, 1792 * 2)
        e("    v_and_b32 v5, 15, v2")
        e("    v_lshrrev_b32 v6, 4, v2")
        e("    s_lshl_b32 s20, s16, 7")
        e("    s_lshl_b32 s21, s18, 5")
        e("    s_add_u32 s20, s20, s21")
        e("    s_mul_i32 s21, s17, 176")
        if nab > 0:
            e("    v_add_u32 v7, s21, v5")
            e("    v_lshlrev_b32 v7, 12, v7")
            e("    v_lshl_add_u32 v7, v6, 3, v7")
            e("    s_lshl_b32 s22, s20, 1")
            e("    v_add_u32 v7, s22, v7")
        if nab < 11:
            e("    v_add_u32 v8, s20, v5")
            e("    v_lshlrev_b32 v8, 12, v8")
            e("    v_lshl_add_u32 v8, v6, 3, v8")
            e(f"    s_sub_u32 s22, s21, {1024 - 16*nab}")
            e("    s_lshl_b32 s22, s22, 1")
            e("    v_add_u32 v8, s22, v8")
            e("    v_lshlrev_b32 v9, 3, v6")
            e("    v_add_u32 v9, s22, v9")
            for cb in range(nab, 11):
                e(f"    buffer_load_dwordx2 v[{FR[0]+2*cb}:{FR[0]+2*cb+1}], v9, s[36:39], 0 offen offset:{32*(cb-nab)}")
        for cb in range(nab):
            e(f"    s_add_u32 s22, s21, {16*cb}")
            e("    s_cmp_ge_u32 s22, 512")
            e("    s_cselect_b32 s23, 0x80008000, 0")
            for rb in range(2):
                d = ACC + (cb * 2 + rb) * 4
                e(f"    v_cvt_pk_bf16_f32 v{d}, v{d}, v{d+1}")
                e(f"    v_cvt_pk_bf16_f32 v{d+1}, v{d+2}, v{d+3}")
                e(f"    v_xor_b32 v{d}, s23, v{d}")
                e(f"    v_xor_b32 v{d+1}, s23, v{d+1}")
                e(f"    s_mov_b32 s22, {16*cb*4096 + 32*rb:#x}")
                e(f"    buffer_store_dwordx2 v[{d}:{d+1}], v7, s[8:11], s22 offen")
        if nab < 11:
            e("    s_waitcnt vmcnt(0)")
        for cb in range(nab, 11):
            bb = FR[0] + 2 * cb
            t = FR[1]
            e(f"    v_lshlrev_b32 v{t}, 16, v{bb}")
            e(f"    v_and_b32 v{t+1}, 0xffff0000, v{bb}")
            e(f"    v_lshlrev_b32 v{t+2}, 16, v{bb+1}")
            e(f"    v_and_b32 v{t+3}, 0xffff0000, v{bb+1}")
            for rb in range(2):
                d = ACC + (cb * 2 + rb) * 4
                e(f"    v_cvt_pk_bf16_f32 v{t+4}, v{d}, v{d+1}")
                e(f"    v_cvt_pk_bf16_f32 v{t+5}, v{d+2}, v{d+3}")
                e(f"    v_lshlrev_b32 v{d}, 16, v{t+4}")
                e(f"    v_and_b32 v{d+1}, 0xffff0000, v{t+4}")
                e(f"    v_lshlrev_b32 v{d+2}, 16, v{t+5}")
                e(f"    v_and_b32 v{d+3}, 0xffff0000, v{t+5}")
                for k in range(4):
                    e(f"    v_add_f32 v{d+k}, v{d+k}, v{t+k}")
                e(f"    v_cvt_pk_bf16_f32 v{t+4}, v{d}, v{d+1}")
                e(f"    v_cvt_pk_bf16_f32 v{t+5}, v{d+2}, v{d+3}")
                e(f"    v_lshlrev_b32 v{d}, 16, v{t+4}")
                e(f"    v_and_b32 v{d+1}, 0xffff0000, v{t+4}")
                e(f"    v_lshlrev_b32 v{d+2}, 16, v{t+5}")
                e(f"    v_and_b32 v{d+3}, 0xffff0000, v{t+5}")
                for k in range(4):
                    e(f"    v_max_f32 v{d+k}, 0, v{d+k}")
                    e(f"    v_mul_f32 v{d+k}, v{d+k}, v{d+k}")
                e(f"    v_cvt_pk_bf16_f32 v{d}, v{d}, v{d+1}")
                e(f"    v_cvt_pk_bf16_f32 v{d+1}, v{d+2}, v{d+3}")
                e(f"    s_mov_b32 s22, {16*rb*4096 + 32*(cb-nab):#x}")
                e(f"    buffer_store_dwordx2 v[{d}:{d+1}], v8, s[12:15], s22 offen")
        e("    s_endpgm")
    e("g1_done:")
    e("    s_endpgm")
    kd("gemm1_kernel", 216)

G2_STAGE = 32768
def gen_gemm2():
    kernel_begin("gemm2_kernel")
    e("    s_cmp_ge_u32 s2, 256")
    e("    s_cbranch_scc1 g2_done")
    e("    s_load_dwordx2 s[6:7], s[0:1], 96")
    e("    s_load_dwordx2 s[40:41], s[0:1], 8")
    e("    s_load_dwordx2 s[42:43], s[0:1], 16")
    e("    s_and_b32 s3, s2, 7")
    e("    s_lshr_b32 s4, s2, 3")
    e("    s_and_b32 s17, s4, 3")
    e("    s_lshr_b32 s4, s4, 2")
    e("    s_lshl_b32 s3, s3, 3")
    e("    s_add_u32 s3, s3, s4")
    e("    s_and_b32 s16, s3, 15")
    e("    s_lshr_b32 s19, s3, 4")
    e("    v_lshrrev_b32 v1, 6, v0")
    e("    v_and_b32 v2, 63, v0")
    e("    s_nop 0")
    e("    v_readfirstlane_b32 s18, v1")
    e("    s_waitcnt lgkmcnt(0)")
    e(f"    s_add_u32 s44, s6, {H_OFF:#x}")
    e("    s_addc_u32 s45, s7, 0")
    e(f"    s_add_u32 s46, s6, {AT_OFF:#x}")
    e("    s_addc_u32 s47, s7, 0")
    e(f"    s_add_u32 s48, s6, {AT_OFF + 0x200000:#x}")
    e("    s_addc_u32 s49, s7, 0")
    e(f"    s_add_u32 s50, s6, {W2T_OFF:#x}")
    e("    s_addc_u32 s51, s7, 0")
    for r in (41, 43, 45, 47, 49, 51):
        e(f"    s_and_b32 s{r}, s{r}, 0xffff")
    e("    s_mul_i32 s26, s19, 23")
    e("    s_add_u32 s34, s26, 23")
    e("    s_mov_b32 s8, s40")
    e("    s_mov_b32 s9, s41")
    e("    s_mov_b32 s12, s46")
    e("    s_mov_b32 s13, s47")
    e("    s_mov_b32 s35, s26")
    e("    s_cmp_lt_u32 s26, 32")
    e("    s_cbranch_scc1 g2_seg_ok")
    e("    s_mov_b32 s8, s42")
    e("    s_mov_b32 s9, s43")
    e("    s_mov_b32 s12, s48")
    e("    s_mov_b32 s13, s49")
    e("    s_sub_u32 s35, s26, 32")
    e("    s_cmp_lt_u32 s26, 64")
    e("    s_cbranch_scc1 g2_seg_ok")
    e("    s_mov_b32 s8, s44")
    e("    s_mov_b32 s9, s45")
    e("    s_mov_b32 s12, s50")
    e("    s_mov_b32 s13, s51")
    e("    s_sub_u32 s35, s26, 64")
    e("g2_seg_ok:")
    e("    s_mov_b32 s10, 0x800000")
    e("    s_mov_b32 s11, 0x20000")
    e("    s_mov_b32 s14, 0x200000")
    e("    s_mov_b32 s15, 0x20000")
    e("    v_lshrrev_b32 v3, 3, v2")
    e("    v_and_b32 v4, 7, v2")
    e("    v_lshrrev_b32 v5, 4, v2")
    e("    s_and_b32 s20, s18, 1")
    e("    s_lshl_b32 s20, s20, 2")
    e("    v_add_u32 v5, s20, v5")
    e("    v_xor_b32 v4, v4, v5")
    e("    v_lshlrev_b32 v4, 4, v4")
    e("    v_lshl_add_u32 v3, v3, 12, v4")
    e("    s_lshl_b32 s21, s18, 3")
    e("    s_lshl_b32 s20, s16, 7")
    e("    s_add_u32 s20, s20, s21")
    e("    s_lshl_b32 s20, s20, 12")
    e("    v_add_u32 v10, s20, v3")
    for i in range(1, 4):
        e(f"    v_add_u32 v{10+i}, {32*4096*i:#x}, v10")
    e("    s_lshl_b32 s20, s17, 7")
    e("    s_add_u32 s20, s20, s21")
    e("    s_lshl_b32 s20, s20, 12")
    e("    v_add_u32 v14, s20, v3")
    for i in range(1, 4):
        e(f"    v_add_u32 v{14+i}, {32*4096*i:#x}, v14")
    e("    s_lshl_b32 s24, s18, 10")
    e("    v_and_b32 v5, 31, v2")
    e("    v_lshrrev_b32 v6, 5, v2")
    e("    v_lshrrev_b32 v7, 1, v5")
    e("    v_and_b32 v7, 7, v7")
    e("    v_xor_b32 v6, v6, v7")
    e("    v_lshlrev_b32 v6, 4, v6")
    e("    v_lshl_add_u32 v6, v5, 7, v6")
    e("    s_lshr_b32 s20, s18, 1")
    e("    s_and_b32 s21, s18, 1")
    e("    s_lshl_b32 s22, s20, 13")
    e("    s_lshl_b32 s23, s21, 13")
    e("    s_add_u32 s23, s23, 0x4000")
    e("    v_add_u32 v20, s22, v6")
    e("    v_add_u32 v24, s23, v6")
    for ks in range(1, 4):
        e(f"    v_xor_b32 v{20+ks}, {32*ks}, v20")
        e(f"    v_xor_b32 v{24+ks}, {32*ks}, v24")
    ACC = 28
    FR = [92, 108]
    for r in range(64):
        e(f"    v_mov_b32 v{ACC+r}, 0")
    e("    s_mov_b32 s27, 0")

    def dma():
        e("    s_lshl_b32 s29, s35, 7")
        e("    s_cmp_ge_u32 s26, s34")
        e("    s_cselect_b32 s29, 0x80000000, s29")
        e("    s_add_u32 s30, s27, s24")
        for i in range(4):
            e(f"    s_add_u32 m0, s30, {4096*i}")
            e("    s_nop 0")
            e(f"    buffer_load_dwordx4 v{10+i}, s[8:11], s29 offen lds")
        for i in range(4):
            e(f"    s_add_u32 m0, s30, {16384 + 4096*i}")
            e("    s_nop 0")
            e(f"    buffer_load_dwordx4 v{14+i}, s[12:15], s29 offen lds")
        e("    s_add_u32 s26, s26, 1")
        e("    s_add_u32 s35, s35, 1")
        e(f"    s_add_u32 s27, s27, {G2_STAGE}")
        e("    s_and_b32 s27, s27, 0x1ffff")
        dma.n += 1
        e("    s_cmp_lg_u32 s26, 32")
        e(f"    s_cbranch_scc1 g2_sw1_{dma.n}")
        e("    s_mov_b32 s8, s42")
        e("    s_mov_b32 s9, s43")
        e("    s_mov_b32 s12, s48")
        e("    s_mov_b32 s13, s49")
        e("    s_mov_b32 s35, 0")
        e(f"g2_sw1_{dma.n}:")
        e("    s_cmp_lg_u32 s26, 64")
        e(f"    s_cbranch_scc1 g2_sw2_{dma.n}")
        e("    s_mov_b32 s8, s44")
        e("    s_mov_b32 s9, s45")
        e("    s_mov_b32 s12, s50")
        e("    s_mov_b32 s13, s51")
        e("    s_mov_b32 s35, 0")
        e(f"g2_sw2_{dma.n}:")
    dma.n = 0

    def reads(buf, ks):
        f = FR[buf]
        e(f"    ds_read_b128 v[{f}:{f+3}], v{20+ks}")
        e(f"    ds_read_b128 v[{f+4}:{f+7}], v{20+ks} offset:4096")
        e(f"    ds_read_b128 v[{f+8}:{f+11}], v{24+ks}")
        e(f"    ds_read_b128 v[{f+12}:{f+15}], v{24+ks} offset:4096")

    def mfmas(buf):
        f = FR[buf]
        for bm in range(2):
            for bn in range(2):
                d = ACC + (bm * 2 + bn) * 16
                e(f"    v_mfma_f32_32x32x16_bf16 v[{d}:{d+15}], v[{f+4*bm}:{f+4*bm+3}], v[{f+8+4*bn}:{f+11+4*bn}], v[{d}:{d+15}]")

    for _ in range(3):
        dma()
    e("    s_waitcnt vmcnt(16)")
    e("    s_barrier")
    reads(0, 0)
    e("    s_mov_b32 s32, 0")
    e("g2_loop:")
    reads(1, 1)
    e("    s_waitcnt lgkmcnt(4)")
    mfmas(0)
    reads(0, 2)
    e("    s_waitcnt lgkmcnt(4)")
    mfmas(1)
    reads(1, 3)
    e("    s_waitcnt lgkmcnt(4)")
    mfmas(0)
    e("    s_waitcnt vmcnt(8)")
    e("    s_barrier")
    dma()
    for v in range(20, 28):
        e(f"    v_add_u32 v{v}, {G2_STAGE}, v{v}")
        e(f"    v_and_b32 v{v}, 0x1ffff, v{v}")
    reads(0, 0)
    e("    s_waitcnt lgkmcnt(4)")
    mfmas(1)
    e("    s_add_u32 s32, s32, 1")
    e("    s_cmp_lt_u32 s32, 23")
    e("    s_cbranch_scc1 g2_loop")
    e("    s_waitcnt lgkmcnt(0)")
    e("    s_nop 7")
    e("    s_nop 7")
    e(f"    s_lshl_b32 s22, s19, 22")
    e(f"    s_add_u32 s22, s22, {PART_OFF:#x}")
    e("    s_add_u32 s8, s6, s22")
    e("    s_addc_u32 s9, s7, 0")
    e("    s_and_b32 s9, s9, 0xffff")
    e("    s_mov_b32 s10, 0x400000")
    e("    v_and_b32 v5, 31, v2")
    e("    v_lshrrev_b32 v6, 5, v2")
    e("    s_lshl_b32 s22, s16, 7")
    e("    s_lshl_b32 s23, s20, 6")
    e("    s_add_u32 s22, s22, s23")
    e("    s_lshl_b32 s23, s17, 7")
    e("    s_lshl_b32 s25, s21, 6")
    e("    s_add_u32 s23, s23, s25")
    e("    v_lshlrev_b32 v6, 2, v6")
    e("    v_add_u32 v6, s22, v6")
    e("    v_lshlrev_b32 v6, 9, v6")
    e("    v_add_u32 v6, v6, v5")
    e("    v_add_u32 v6, s23, v6")
    e("    v_lshlrev_b32 v6, 2, v6")
    for bm in range(2):
        for bn in range(2):
            d = ACC + (bm * 2 + bn) * 16
            for r in range(16):
                off = ((bm * 32 + 8 * (r >> 2) + (r & 3)) * 512 + bn * 32) * 4
                e(f"    s_mov_b32 s22, {off:#x}")
                e(f"    buffer_store_dword v{d+r}, v6, s[8:11], s22 offen")
    e("g2_done:")
    e("    s_endpgm")
    kd("gemm2_kernel", 128)

def gen_reduce():
    kernel_begin("reduce_kernel")
    e("    s_cmp_ge_u32 s2, 512")
    e("    s_cbranch_scc1 rd_done")
    e("    s_load_dwordx2 s[4:5], s[0:1], 0")
    e("    s_load_dwordx2 s[6:7], s[0:1], 96")
    e("    s_load_dwordx2 s[20:21], s[0:1], 72")
    e("    s_load_dwordx2 s[22:23], s[0:1], 80")
    e("    s_waitcnt lgkmcnt(0)")
    srd(8, 4, 0, 2048 * 512 * 2)
    srd(12, 6, PART_OFF, 4 * 0x400000)
    srd(16, 20, 0, 1024)
    srd(24, 22, 0, 2048 * 512 * 2)
    e("    s_lshl_b32 s3, s2, 8")
    e("    v_add_u32 v1, s3, v0")
    e("    v_lshlrev_b32 v2, 4, v1")
    e("    v_lshlrev_b32 v3, 5, v1")
    e("    v_and_b32 v4, 0x3ff, v2")
    e("    buffer_load_dwordx4 v[8:11], v2, s[8:11], 0 offen")
    e("    buffer_load_dwordx4 v[12:15], v4, s[16:19], 0 offen")
    for p in range(4):
        e(f"    s_mov_b32 s3, {p*0x400000:#x}")
        e(f"    buffer_load_dwordx4 v[{16+8*p}:{19+8*p}], v3, s[12:15], s3 offen")
        e(f"    buffer_load_dwordx4 v[{20+8*p}:{23+8*p}], v3, s[12:15], s3 offen offset:16")
    e("    s_waitcnt vmcnt(0)")
    for k in range(8):
        for p in range(1, 4):
            e(f"    v_add_f32 v{16+k}, v{16+k}, v{16+8*p+k}")
    for i in range(4):
        e(f"    v_lshlrev_b32 v48, 16, v{8+i}")
        e(f"    v_and_b32 v49, 0xffff0000, v{8+i}")
        e(f"    v_add_f32 v{16+2*i}, v{16+2*i}, v48")
        e(f"    v_add_f32 v{17+2*i}, v{17+2*i}, v49")
        e(f"    v_lshlrev_b32 v48, 16, v{12+i}")
        e(f"    v_and_b32 v49, 0xffff0000, v{12+i}")
        e(f"    v_add_f32 v{16+2*i}, v{16+2*i}, v48")
        e(f"    v_add_f32 v{17+2*i}, v{17+2*i}, v49")
        e(f"    v_cvt_pk_bf16_f32 v{8+i}, v{16+2*i}, v{17+2*i}")
    e("    buffer_store_dwordx4 v[8:11], v2, s[24:27], 0 offen")
    e("rd_done:")
    e("    s_endpgm")
    kd("reduce_kernel", 56)

def main():
    hdr = open(OUT + ".ref").read().split("\n")
    for line in hdr:
        if line.startswith("; @launch") or not line.startswith(";"):
            break
        e(line)
    e("; @launch kernel=prep_kernel grid=(1024,1,1) block=(256,1,1) lds=9216")
    e(f"; @launch kernel=gemm1_kernel grid=(256,1,1) block=(256,1,1) lds={G1_STAGE*G1_NS}")
    e(f"; @launch kernel=gemm2_kernel grid=(256,1,1) block=(256,1,1) lds={G2_STAGE*4}")
    e("; @launch kernel=reduce_kernel grid=(512,1,1) block=(256,1,1) lds=0")
    e('.amdgcn_target "amdgcn-amd-amdhsa--gfx950"')
    e(".text")
    gen_prep()
    gen_gemm1()
    gen_gemm2()
    gen_reduce()
    open(OUT, "w").write("\n".join(L) + "\n")

main()
```
